```python
import torch

def _softmax(x, axis=-1):
    return torch.softmax(x, dim=axis)
def _gelu(x):
    return torch.nn.functional.gelu(x, approximate="tanh")
def _silu(x):
    return torch.nn.functional.silu(x)
def _sigmoid(x):
    return torch.sigmoid(x)
def _layernorm(x, axis=-1, eps=1e-5):
    m = x.mean(dim=axis, keepdim=True)
    v = x.var(dim=axis, keepdim=True, unbiased=False)
    return (x - m) / torch.sqrt(v + eps)
def _scatter_add(tgt, idx, src, axis=0):
    return tgt.clone().index_add_(axis, idx, src)
def _segment_sum(src, seg, n):
    out = torch.zeros((n,) + src.shape[1:], dtype=src.dtype)
    return out.index_add_(0, seg, src)
def _pad(x, pw):
    flat = tuple(v for pair in reversed(pw) for v in pair)
    return torch.nn.functional.pad(x, flat)

kernel_name = 'interleave_layers__gqa_block_cached__glu_gated_glu__decode'

def setup_inputs():

    _w = (lambda a: (lambda t: t.to(torch.bfloat16) if t.is_floating_point() else t)(torch.as_tensor(a)))
    def _A_setup():
        B, Sq, D = 8, 1, 512
        Hq, Hkv, Sk, Dh = 32, 32, 4096, 128
        assert Hq % Hkv == 0, (Hq, Hkv)
        return {
            "x": _w((lambda *s: torch.randn(*s, dtype=torch.bfloat16) * 0.05)(B, Sq, D)),
            "k_cache": _w((lambda *s: torch.randn(*s, dtype=torch.bfloat16) * 1.6)(B, Hkv, Sk, Dh)),
            "v_cache": _w((lambda *s: torch.randn(*s, dtype=torch.bfloat16) * 1.6)(B, Hkv, Sk, Dh)),
            "wq": _w((lambda *s: torch.randn(*s, dtype=torch.bfloat16) * 1.6)(D, Hq * Dh) * (D ** -0.5)),
            "wo": _w((lambda *s: torch.randn(*s, dtype=torch.bfloat16) * 1.6)(Hq * Dh, D) * ((Hq * Dh) ** -0.5)),
        }
    _A_in = _A_setup()

    def _B_setup():
        B, S, D, F = 8, 1, 512, 1376
        return {
            "x": _w((lambda *s: torch.randn(*s, dtype=torch.bfloat16) * 0.05)(B, S, D)),
            "w_gate": _w((lambda *s: torch.randn(*s, dtype=torch.bfloat16) * 0.05)(D, F)),
            "w_up": _w((lambda *s: torch.randn(*s, dtype=torch.bfloat16) * 0.05)(D, F)),
            "w_down": _w((lambda *s: torch.randn(*s, dtype=torch.bfloat16) * 0.05)(F, D)),
        }
    _B_in = _B_setup()

    return {
        "A_x": _A_in["x"],
        "A_k_cache": _A_in["k_cache"],
        "A_v_cache": _A_in["v_cache"],
        "A_wq": _A_in["wq"],
        "A_wo": _A_in["wo"],
        "B_x": _B_in["x"],
        "B_w_gate": _B_in["w_gate"],
        "B_w_up": _B_in["w_up"],
        "B_w_down": _B_in["w_down"],
    }

def reference(A_x, A_k_cache, A_v_cache, A_wq, A_wo, B_x, B_w_gate, B_w_up, B_w_down):
    def _A_ref(x, k_cache, v_cache, wq, wo):
        B, Sq, D = x.shape
        Hq, Dh = 32, 128
        Hkv = k_cache.shape[1]
        rep = Hq // Hkv
        q = (lambda x, *d: x.permute(*d))((x @ wq).reshape(B, Sq, Hq, Dh), 0, 2, 1, 3)
        k = (lambda x, n, axis: torch.repeat_interleave(x, n, dim=axis))(k_cache, rep, axis=1)
        v = (lambda x, n, axis: torch.repeat_interleave(x, n, dim=axis))(v_cache, rep, axis=1)
        scores = torch.einsum("bhqd,bhkd->bhqk", q, k) * (Dh ** -0.5)
        p = _softmax(scores, axis=-1)
        o = torch.einsum("bhqk,bhkd->bhqd", p, v)
        return (lambda x, *d: x.permute(*d))(o, 0, 2, 1, 3).reshape(B, Sq, Hq * Dh) @ wo

    def _B_ref(x, w_gate, w_up, w_down):
        g = torch.einsum("bsd,df->bsf", x, w_gate)
        u = torch.einsum("bsd,df->bsf", x, w_up)
        h = _sigmoid(g) * u
        return torch.einsum("bsf,fd->bsd", h, w_down)

    x = A_x
    x = x + _A_ref(_layernorm(x, axis=-1), A_k_cache, A_v_cache, A_wq, A_wo)
    x = x + _B_ref(_layernorm(x, axis=-1), B_w_gate, B_w_up, B_w_down)
    x = x + _A_ref(_layernorm(x, axis=-1), A_k_cache, A_v_cache, A_wq, A_wo)
    x = x + _B_ref(_layernorm(x, axis=-1), B_w_gate, B_w_up, B_w_down)
    return x
```

```python
from asmlib import *
def body(name, U, BL):
    L = []; a = L.append
    a("    s_load_dwordx4 s[4:7], s[0:1], 0")
    a("    s_load_dwordx2 s[12:13], s[0:1], 16")
    a("    s_load_dwordx8 s[16:23], s[0:1], 24")
    a("    v_lshrrev_b32 v1, 6, v0")
    a("    s_nop 0")
    a("    v_readfirstlane_b32 s24, v1")
    a("    v_and_b32 v2, 63, v0")
    a("    v_lshlrev_b32 v2, 4, v2")
    a("    s_lshl_b32 s33, s2, 2")
    a("    s_add_u32 s33, s33, s24")
    a("    s_lshl_b32 s34, s33, 2")
    a("    s_waitcnt lgkmcnt(0)")
    a("    s_load_dword s30, s[12:13], s34")
    a("    s_memrealtime s[40:41]")
    a("    s_waitcnt lgkmcnt(0)")
    a("    s_cmp_eq_u32 s30, -1")
    a(f"    s_cbranch_scc1 L_end_{name}")
    a("    s_mov_b32 s8, s4\n    s_and_b32 s9, s5, 0xffff\n    s_mov_b32 s10, s16\n    s_mov_b32 s11, 0x20000")
    a("    s_mov_b32 s27, 0")
    a(f"L_outer_{name}:")
    a("    s_mov_b32 s28, s30")
    a("    s_mov_b32 s32, 0")
    a(f"L_inner_{name}:")
    for i in range(BL):
        a(f"    s_waitcnt vmcnt({U-1})")
        if i < 4: a(f"    buffer_load_dwordx4 v[{8+4*i}:{11+4*i}], v2, s[8:11], s28 offen offset:{i*1024} nt")
        else:
            if i == 4: a("    s_add_u32 s29, s28, 4096")
            a(f"    buffer_load_dwordx4 v[{8+4*i}:{11+4*i}], v2, s[8:11], s29 offen offset:{(i-4)*1024} nt")
    a("    s_add_u32 s28, s28, s18")
    a("    s_add_u32 s32, s32, 1")
    a("    s_cmp_lt_u32 s32, s17")
    a(f"    s_cbranch_scc1 L_inner_{name}")
    a("    s_add_u32 s30, s30, s20")
    a("    s_xor_b32 s30, s30, s21")
    a("    s_add_u32 s27, s27, 1")
    a("    s_cmp_lt_u32 s27, s19")
    a(f"    s_cbranch_scc1 L_outer_{name}")
    a("    s_waitcnt vmcnt(0)")
    a("    s_memrealtime s[42:43]")
    a("    s_waitcnt lgkmcnt(0)")
    a("    s_lshl_b32 s33, s33, 5")
    a("    v_mov_b32 v4, s40\n    v_mov_b32 v5, s41\n    v_mov_b32 v6, s42\n    v_mov_b32 v7, s43")
    a("    v_mov_b32 v1, s33")
    a("    v_cmp_eq_u32 vcc, 0, v2")
    a("    s_and_saveexec_b64 s[34:35], vcc")
    a("    global_store_dwordx4 v1, v[4:7], s[6:7]")
    a("    s_waitcnt vmcnt(0)")
    a(f"L_end_{name}:")
    return "\n".join(L)
src = HEAD; ks = []
for U in (6, 8, 10, 12):
    for BL in (1, 2, 4, 8):
        n = f"s2_{U}_{BL}"
        src += kernel(n, body(n, U, BL), vgpr=48, sgpr=64); ks.append((n, 48, 64, 256))
src += meta(ks); build(src, "s2")
```

```python
from asmlib import *
def body(name, U, BL, ST):
    L = []; a = L.append
    a("    s_load_dwordx4 s[4:7], s[0:1], 0")
    a("    s_load_dwordx2 s[12:13], s[0:1], 16")
    a("    s_load_dwordx8 s[16:23], s[0:1], 24")
    a("    v_lshrrev_b32 v1, 6, v0")
    a("    s_nop 0")
    a("    v_readfirstlane_b32 s24, v1")
    a("    v_and_b32 v2, 63, v0")
    a("    v_lshlrev_b32 v2, 4, v2")
    a("    s_lshl_b32 s33, s2, 2")
    a("    s_add_u32 s33, s33, s24")
    a("    s_lshl_b32 s34, s33, 2")
    a("    s_waitcnt lgkmcnt(0)")
    a("    s_load_dword s30, s[12:13], s34")
    a("    s_memrealtime s[40:41]")
    a("    s_waitcnt lgkmcnt(0)")
    a("    s_cmp_eq_u32 s30, -1")
    a(f"    s_cbranch_scc1 L_end_{name}")
    a("    s_mov_b32 s8, s4\n    s_and_b32 s9, s5, 0xffff\n    s_mov_b32 s10, s16\n    s_mov_b32 s11, 0x20000")
    a("    s_mov_b32 s27, 0")
    a(f"L_outer_{name}:")
    a("    s_mov_b32 s28, s30")
    a("    s_mov_b32 s32, 0")
    a(f"L_inner_{name}:")
    for i in range(BL):
        a(f"    s_waitcnt vmcnt({U-1})")
        if i < 4: a(f"    buffer_load_dwordx4 v[{8+4*i}:{11+4*i}], v2, s[8:11], s28 offen offset:{i*1024} nt")
        else:
            if i == 4: a("    s_add_u32 s29, s28, 4096")
            a(f"    buffer_load_dwordx4 v[{8+4*i}:{11+4*i}], v2, s[8:11], s29 offen offset:{(i-4)*1024} nt")
    a("    s_add_u32 s28, s28, s18")
    a("    s_add_u32 s32, s32, 1")
    a("    s_cmp_lt_u32 s32, s17")
    a(f"    s_cbranch_scc1 L_inner_{name}")
    a("    s_add_u32 s30, s30, s20")
    if ST:
        a("    s_bitcmp1_b32 s27, 0")
        a(f"    s_cbranch_scc0 L_nost_{name}")
        a(f"    s_cmp_ge_u32 s24, {ST[1]}")
        a(f"    s_cbranch_scc1 L_nost_{name}")
        a("    s_lshl_b32 s36, s33, 9")
        a("    s_add_u32 s36, s36, 0x10000")
        a("    v_lshrrev_b32 v40, 1, v2")
        a("    v_add_u32 v40, s36, v40")
        a("    s_mov_b32 exec_hi, 0xffff")
        a("    " + ST[0])
        a("    s_mov_b64 exec, -1")
        a(f"L_nost_{name}:")
    a("    s_add_u32 s27, s27, 1")
    a("    s_cmp_lt_u32 s27, s19")
    a(f"    s_cbranch_scc1 L_outer_{name}")
    a("    s_waitcnt vmcnt(0)")
    a("    s_memrealtime s[42:43]")
    a("    s_waitcnt lgkmcnt(0)")
    a("    s_lshl_b32 s33, s33, 5")
    a("    v_mov_b32 v4, s40\n    v_mov_b32 v5, s41\n    v_mov_b32 v6, s42\n    v_mov_b32 v7, s43")
    a("    v_mov_b32 v1, s33")
    a("    v_cmp_eq_u32 vcc, 0, v2")
    a("    s_and_saveexec_b64 s[34:35], vcc")
    a("    global_store_dwordx4 v1, v[4:7], s[6:7]")
    a("    s_waitcnt vmcnt(0)")
    a(f"L_end_{name}:")
    return "\n".join(L)
src = HEAD; ks = []
V = {'none': None,
     'st2': ("global_store_dwordx2 v40, v[2:3], s[6:7]", 2),
     'st1': ("global_store_dwordx2 v40, v[2:3], s[6:7]", 1),
     'st2s': ("global_store_dwordx2 v40, v[2:3], s[6:7] sc1", 2),
     'st2n': ("global_store_dwordx2 v40, v[2:3], s[6:7] nt", 2),
     'ld2': ("global_load_dwordx2 v[42:43], v40, s[6:7] sc1", 2),
     'at2': ("global_atomic_swap_x2 v40, v[2:3], s[6:7]", 2)}
for k, st in V.items():
    n = f"s5_8_{k}"
    src += kernel(n, body(n, 8, 4, st), vgpr=48, sgpr=64); ks.append((n, 48, 64, 256))
src += meta(ks); build(src, "s5")
```
